```python
import torch

def _softmax(x, axis=-1):
    return torch.softmax(x, dim=axis)
def _gelu(x):
    return torch.nn.functional.gelu(x, approximate="tanh")
def _silu(x):
    return torch.nn.functional.silu(x)
def _sigmoid(x):
    return torch.sigmoid(x)
def _layernorm(x, axis=-1, eps=1e-5):
    m = x.mean(dim=axis, keepdim=True)
    v = x.var(dim=axis, keepdim=True, unbiased=False)
    return (x - m) / torch.sqrt(v + eps)
def _scatter_add(tgt, idx, src, axis=0):
    return tgt.clone().index_add_(axis, idx, src)
def _segment_sum(src, seg, n):
    out = torch.zeros((n,) + src.shape[1:], dtype=src.dtype)
    return out.index_add_(0, seg, src)
def _pad(x, pw):
    flat = tuple(v for pair in reversed(pw) for v in pair)
    return torch.nn.functional.pad(x, flat)

kernel_name = 'recurrent_scan__mha_block_cached__dense_activation_relu__prompt'

def setup_inputs():

    _w = (lambda a: (lambda t: t.to(torch.bfloat16) if t.is_floating_point() else t)(torch.as_tensor(a)))
    def _A_setup():
        B, Sq, D = 1, 2048, 512
        H, Sk, Dh = 32, 2048, 128
        return {
            "x": _w((lambda *s: torch.randn(*s, dtype=torch.bfloat16) * 0.05)(B, Sq, D)),
            "k_cache": _w((lambda *s: torch.randn(*s, dtype=torch.bfloat16) * 1.6)(B, H, Sk, Dh)),
            "v_cache": _w((lambda *s: torch.randn(*s, dtype=torch.bfloat16) * 0.2)(B, H, Sk, Dh)),
            "wq": _w((lambda *s: torch.randn(*s, dtype=torch.bfloat16) * 1.6)(D, H * Dh) * (D ** -0.5)),
            "wo": _w((lambda *s: torch.randn(*s, dtype=torch.bfloat16) * 0.2)(H * Dh, D) * ((H * Dh) ** -0.5)),
        }
    _A_in = _A_setup()

    def _B_setup():
        B, S, D, Dff = 1, 2048, 512, 1792
        return {
            "x": _w((lambda *s: torch.randn(*s, dtype=torch.bfloat16) * 0.05)(B, S, D)),
            "w1": _w((lambda *s: torch.randn(*s, dtype=torch.bfloat16) * 0.1)(D, Dff)),
            "w2": _w((lambda *s: torch.randn(*s, dtype=torch.bfloat16) * 0.1)(Dff, D)),
        }
    _B_in = _B_setup()

    return {
        "A_x": _A_in["x"],
        "A_k_cache": _A_in["k_cache"],
        "A_v_cache": _A_in["v_cache"],
        "A_wq": _A_in["wq"],
        "A_wo": _A_in["wo"],
        "B_x": _B_in["x"],
        "B_w1": _B_in["w1"],
        "B_w2": _B_in["w2"],
    }

def reference(A_x, A_k_cache, A_v_cache, A_wq, A_wo, B_x, B_w1, B_w2):
    def _A_ref(x, k_cache, v_cache, wq, wo):
        B, Sq, D = x.shape
        H, Dh = 32, 128
        q = (lambda x, *d: x.permute(*d))((x @ wq).reshape(B, Sq, H, Dh), 0, 2, 1, 3)
        scores = torch.einsum("bhqd,bhkd->bhqk", q, k_cache) * (Dh ** -0.5)
        p = _softmax(scores, axis=-1)
        o = torch.einsum("bhqk,bhkd->bhqd", p, v_cache)
        return (lambda x, *d: x.permute(*d))(o, 0, 2, 1, 3).reshape(B, Sq, H * Dh) @ wo

    def _B_ref(x, w1, w2):
        h = torch.einsum("bsd,df->bsf", x, w1)
        zero = torch.zeros_like(h)
        h = torch.maximum(h, zero)
        return torch.einsum("bsf,fd->bsd", h, w2)

    x = A_x
    xn = _layernorm(x, axis=-1)
    s = _A_ref(xn, A_k_cache, A_v_cache, A_wq, A_wo)
    g = _silu(_B_ref(xn, B_w1, B_w2))
    return x + s * g
```

```python
class Asm:
    def __init__(self):
        self.lines = []
        self.uid = 0
    def __call__(self, s):
        self.lines.append("    " + s)
    def raw(self, s):
        self.lines.append(s)
    def label(self, name):
        self.lines.append(name + ":")
    def c(self, s):
        self.lines.append("    ; " + s)
    def newlabel(self, p="L"):
        self.uid += 1
        return f"{p}_{self.uid}"
    def text(self):
        return "\n".join(self.lines) + "\n"

def vr(i, n=1):
    return f"v{i}" if n == 1 else f"v[{i}:{i+n-1}]"
def ar(i, n=1):
    return f"a{i}" if n == 1 else f"a[{i}:{i+n-1}]"
def sr(i, n=1):
    return f"s{i}" if n == 1 else f"s[{i}:{i+n-1}]"

def kernel_header(a, name):
    a.raw(".text")
    a.raw(f".globl {name}")
    a.raw(".p2align 8")
    a.raw(f".type {name},@function")
    a.raw(f"{name}:")

def kernel_desc(name, vgpr, sgpr, accum):
    return f""".section .rodata,"a"
.p2align 6
.amdhsa_kernel {name}
  .amdhsa_next_free_vgpr {vgpr}
  .amdhsa_next_free_sgpr {sgpr}
  .amdhsa_accum_offset {accum}
  .amdhsa_group_segment_fixed_size 0
  .amdhsa_kernarg_size 88
  .amdhsa_user_sgpr_count 2
  .amdhsa_user_sgpr_kernarg_segment_ptr 1
  .amdhsa_system_sgpr_workgroup_id_x 1
  .amdhsa_float_denorm_mode_32 3
.end_amdhsa_kernel
"""

def interleave(a, mfmas, gaps):
    assert len(mfmas) == len(gaps)
    for m, g in zip(mfmas, gaps):
        if isinstance(m, tuple):
            h = (len(g) + 1) // 2
            a(m[0])
            for f in g[:h]: a(f)
            a(m[1])
            for f in g[h:]: a(f)
            continue
        if m is not None:
            a(m)
        elif g:
            a("s_nop 0")
        for f in g:
            a(f)
```

```python
import sys, json
from asmlib import *

WS_XN = 0
WS_H  = 2 << 20
WS_O  = 10 << 20
WS_STAMP = 64 << 20

MF = "v_mfma_f32_16x16x32_bf16"
BLK = 1088
KTILE = 16 * BLK
KREG = 0
VREG = 4 * KTILE
LDS_ATTN = 8 * KTILE
W1SLOT = 8704

class VM:
    def __init__(self): self.ops = []
    def issue(self, tag): self.ops.append(tag)
    def need(self, tags):
        last = -1
        for i, t in enumerate(self.ops):
            if t in tags: last = i
        assert last >= 0, tags
        n = len(self.ops) - 1 - last
        assert n <= 63, n
        return n

def srd(a, s, lo, off, size, bias=0):
    if isinstance(off, str):
        a(f"s_add_u32 {sr(s)}, s{lo}, {off}")
        a(f"s_addc_u32 {sr(s+1)}, s{lo+1}, 0")
    elif off:
        a(f"s_add_u32 {sr(s)}, s{lo}, {off}")
        a(f"s_addc_u32 {sr(s+1)}, s{lo+1}, 0")
    else:
        a(f"s_mov_b32 {sr(s)}, s{lo}")
        a(f"s_mov_b32 {sr(s+1)}, s{lo+1}")
    if bias:
        a(f"s_sub_u32 {sr(s)}, {sr(s)}, {bias}")
        a(f"s_subb_u32 {sr(s+1)}, {sr(s+1)}, 0")
    a(f"s_mov_b32 {sr(s+2)}, {size + bias}")
    a(f"s_mov_b32 {sr(s+3)}, 0x20000")

def stamp(a, idx, cfg):
    if not cfg.get("stamps"): return
    base = 80 + 4 * idx
    a(f"s_memtime {sr(base,2)}")
    a(f"s_memrealtime {sr(base+2,2)}")

def write_stamps(a, cfg, wave_sgpr, ws_lo, endlabel, region, X, n=20):
    a("s_waitcnt lgkmcnt(0)")
    a(f"s_cmp_lg_u32 {sr(wave_sgpr)}, 0")
    a(f"s_cbranch_scc1 {endlabel}")
    a(f"s_add_u32 s{ws_lo}, s{ws_lo}, {WS_STAMP + region * 65536}")
    a(f"s_addc_u32 s{ws_lo+1}, s{ws_lo+1}, 0")
    a(f"s_lshl_b32 s26, s2, 7")
    a(f"v_mov_b32 {vr(X)}, s26")
    for i in range(n):
        a(f"v_mov_b32 {vr(X+1)}, s{80+i}")
        a(f"global_store_dword {vr(X)}, {vr(X+1)}, s[{ws_lo}:{ws_lo+1}] offset:{4*i}")

def gen_ln(a, name, cfg):
    kernel_header(a, name)
    a("s_cmp_ge_u32 s2, 128")
    a("s_cbranch_scc1 ln_end")
    a("s_load_dwordx2 s[4:5], s[0:1], 0")
    a("s_load_dwordx2 s[6:7], s[0:1], 80")
    a("v_lshrrev_b32 v1, 4, v0")
    a("v_and_b32 v2, 15, v0")
    a("s_lshl_b32 s3, s2, 14")
    a("v_lshlrev_b32 v3, 10, v1")
    a("v_lshl_add_u32 v3, v2, 6, v3")
    a("s_waitcnt lgkmcnt(0)")
    srd(a, 8, 4, "s3", 16384)
    srd(a, 12, 6, WS_XN, 2 << 20)
    for i in range(4):
        a(f"buffer_load_dwordx4 v[{8+4*i}:{11+4*i}], v3, s[8:11], 0 offen offset:{16*i}")
    a("s_lshl_b32 s16, s2, 14")
    a("v_lshlrev_b32 v4, 10, v2")
    a("v_lshl_add_u32 v4, v1, 4, v4")
    a("s_waitcnt vmcnt(0)")
    for i in range(16):
        a(f"v_lshlrev_b32 v{32+2*i}, 16, v{8+i}")
        a(f"v_and_b32 v{33+2*i}, 0xffff0000, v{8+i}")
    a("v_add_f32 v5, v32, v33")
    for i in range(2, 32):
        a(f"v_add_f32 v5, v5, v{32+i}")
    def rowsum(x):
        for r in (8, 4, 2, 1):
            a("s_nop 1")
            a(f"v_add_f32_dpp v{x}, v{x}, v{x} row_ror:{r} row_mask:0xf bank_mask:0xf")
    rowsum(5)
    a("v_mul_f32 v5, 0x3b000000, v5")
    a("v_sub_f32 v6, v32, v5")
    a("v_mul_f32 v7, v6, v6")
    for i in range(1, 32):
        a(f"v_sub_f32 v6, v{32+i}, v5")
        a("v_fmac_f32 v7, v6, v6")
    rowsum(7)
    a("v_mul_f32 v7, 0x3b000000, v7")
    a("v_cvt_pk_bf16_f32 v5, v5, v7")
    a("v_and_b32 v7, 0xffff0000, v5")
    a("v_lshlrev_b32 v5, 16, v5")
    a("v_add_f32 v7, 0x3727c5ac, v7")
    a("v_cvt_pk_bf16_f32 v7, v7, v7")
    a("v_lshlrev_b32 v7, 16, v7")
    a("v_sqrt_f32 v7, v7")
    a("s_nop 0")
    a("v_cvt_pk_bf16_f32 v7, v7, v7")
    a("v_lshlrev_b32 v7, 16, v7")
    a("v_rcp_f32 v7, v7")
    for i in range(16):
        a(f"v_sub_f32 v{32+2*i}, v{32+2*i}, v5")
        a(f"v_sub_f32 v{33+2*i}, v{33+2*i}, v5")
        a(f"v_cvt_pk_bf16_f32 v6, v{32+2*i}, v{33+2*i}")
        a(f"v_lshlrev_b32 v{32+2*i}, 16, v6")
        a(f"v_and_b32 v{33+2*i}, 0xffff0000, v6")
        a(f"v_mul_f32 v{32+2*i}, v{32+2*i}, v7")
        a(f"v_mul_f32 v{33+2*i}, v{33+2*i}, v7")
        a(f"v_cvt_pk_bf16_f32 v{8+i}, v{32+2*i}, v{33+2*i}")
    for g in range(4):
        b = 64 + 4 * g
        a(f"v_mov_b32 v{b}, v{8+2*g}")
        a(f"v_mov_b32 v{b+1}, v{9+2*g}")
        a(f"v_mov_b32 v{b+2}, v{16+2*g}")
        a(f"v_mov_b32 v{b+3}, v{17+2*g}")
        a(f"buffer_store_dwordx4 v[{b}:{b+3}], v4, s[12:15], s16 offen offset:{256*g}")
    a.label("ln_end")
    a("s_endpgm")

V_LANE = 1
V_KA = 2
V_VA = 4
V_KD = 8
V_VD = 12
V_L = 16
V_T = 20
V_TMP = 24
V_E = 28
V_NEGM = 40
V_WQA = 36
V_W1A = 56
V_WQD = 60
V_W1D = 38
V_XNO = 26
V_S = 64
V_Q = 128
V_P = 192
V_X = 224
A_O = 0
A_K = 192
A_V = 224
A_XN = 0
A_WF = 192
S_KSRD = 4
S_VSRD = 8
S_XSRD = 12
S_OSRD = 16
S_OFFK = 20
S_OFFV = 21
S_M0K = 22
S_M0V = 23
S_CNT = 24
S_THR = 25
S_RET = 30
S_WAVE = 32
S_HEAD = 33
S_QB = 34
S_T0 = 60
S_WQSRD = 40
S_W1SRD = 44
S_HSRD = 48
S_WQOFF = 52
S_W1OFF = 53
S_XOFF = 54
S_M0W1 = 55
S_WS = 28

def Sreg(b, kt, qt, r=0): return V_S + b * 32 + (qt * 2 + kt) * 4 + r
def Preg(b, qt): return V_P + b * 16 + qt * 4
def Oreg(dt, qt): return A_O + (dt * 4 + qt) * 4
def Qreg(qt, kk): return V_Q + (kk * 4 + qt) * 4
def Kreg(kt, kk): return A_K + (kt * 4 + kk) * 4
def Vreg(dt): return A_V + dt * 4

def qk_mfmas(j, zero_c=False):
    b = j & 1
    out = []
    for kt in range(2):
        for kk in range(4):
            for qt in range(4):
                d = vr(Sreg(b, kt, qt), 4)
                c = ("0" if zero_c else vr(V_NEGM + qt * 4, 4)) if kk == 0 else d
                out.append(f"{MF} {d}, {ar(Kreg(kt,kk),4)}, {vr(Qreg(qt,kk),4)}, {c}")
    return out

def pv_mfmas(j, zero_c=False):
    b = j & 1
    out = []
    for dt in range(8):
        for qt in range(4):
            o = ar(Oreg(dt, qt), 4)
            out.append(f"{MF} {o}, {ar(Vreg(dt),4)}, {vr(Preg(b,qt),4)}, {'0' if zero_c else o}")
    return out

def k_reads(sub_j):
    tile, sub = sub_j >> 1, sub_j & 1
    st = tile & 3
    out = []
    for kt in range(2):
        for kk in range(4):
            off = KREG + st * KTILE + (sub * 2 + kt) * 4 * BLK + kk * 64
            out.append(f"ds_read_b128 {ar(Kreg(kt,kk),4)}, {vr(V_KA)} offset:{off}")
    return out

def v_reads(sub_j):
    tile, sub = sub_j >> 1, sub_j & 1
    st = tile & 3
    out = []
    for dt in range(8):
        for sec in range(2):
            base = V_VA + (st >> 1) * 2 + (dt & 1)
            off = (st & 1) * KTILE + (2 * sub + sec) * 4 * BLK + dt * 32
            assert off < 65536
            out.append(f"ds_read_b64_tr_b16 {ar(Vreg(dt) + 2*sec, 2)}, {vr(base)} offset:{off}")
    return out

def dma_k(tile):
    st = tile & 3
    out = [f"s_add_u32 m0, {sr(S_M0K)}, {st * KTILE}"]
    for i in range(4):
        out.append(f"buffer_load_dwordx4 {vr(V_KD+i)}, {sr(S_KSRD,4)}, {sr(S_OFFK)} offen offset:{i*BLK} lds")
    out.append(f"s_add_u32 {sr(S_OFFK)}, {sr(S_OFFK)}, 16384")
    return out

def dma_v(tile):
    st = tile & 3
    out = [f"s_add_u32 m0, {sr(S_M0V)}, {st * KTILE}"]
    for i in range(4):
        out.append(f"buffer_load_dwordx4 {vr(V_VD+i)}, {sr(S_VSRD,4)}, {sr(S_OFFV)} offen offset:{i*BLK} lds")
    out.append(f"s_add_u32 {sr(S_OFFV)}, {sr(S_OFFV)}, 16384")
    return out

def E(i, h): return V_E + (i % 4) * 2 + h

def softmax_pairs(j):
    b = j & 1
    res = []
    for qt in range(4):
        for kt in range(2):
            for rp in range(2):
                i = len(res)
                r = 2 * rp
                T = vr(V_T + qt)
                X0 = f"v_exp_f32 {vr(E(i,0))}, {vr(Sreg(b,kt,qt,r))}"
                X1 = f"v_exp_f32 {vr(E(i,1))}, {vr(Sreg(b,kt,qt,r+1))}"
                if kt == 0 and rp == 0:
                    A0 = f"v_add_f32 {T}, {vr(E(i,0))}, {vr(E(i,1))}"; A1 = None
                else:
                    A0 = f"v_add_f32 {T}, {T}, {vr(E(i,0))}"
                    A1 = f"v_add_f32 {T}, {T}, {vr(E(i,1))}"
                C = f"v_cvt_pk_bf16_f32 {vr(Preg(b,qt) + kt*2 + rp)}, {vr(E(i,0))}, {vr(E(i,1))}"
                res.append((X0, X1, A0, A1, C))
    return res

def gen_slot(a, j, cfg, do_qk=True, do_pv=True, do_soft=True, do_vread=True, do_kread=True,
             dma=None, barrier_vm=None, first_l=False, rare_stubs=None, pv_zero=False):
    a.c(f"---- slot {j} ----")
    mf = (qk_mfmas(j + 1) if do_qk else [None] * 32) + (pv_mfmas(j - 1, pv_zero) if do_pv else [None] * 32)
    nv = [[] for _ in range(64)]
    va = [[] for _ in range(64)]
    post = [[] for _ in range(64)]
    ladd = [] if first_l else [f"v_add_f32 {vr(V_L+q)}, {vr(V_L+q)}, {vr(V_T+q)}" for q in range(4)]
    if do_soft:
        sp = softmax_pairs(j)
        for i, (X0, X1, A0, A1, C) in enumerate(sp):
            va[4*i].append(X0)
            va[4*i+2].append(X1)
            if A1 is None:
                va[4*i+3] += [A0, C]
            else:
                va[4*i+1].append(A0)
                va[4*i+3] += [A1, C]
        va[1] += ladd[:2]
        va[17] += ladd[2:]
        va[49].append(f"v_max3_f32 {vr(V_TMP)}, {vr(V_T)}, {vr(V_T+1)}, {vr(V_T+2)}")
    else:
        va[1] += ladd
    if do_vread:
        for i, r in enumerate(v_reads(j - 1)):
            nv[i].append(r)
    if barrier_vm is not None:
        post[31].append(f"s_waitcnt vmcnt({barrier_vm})" + (" lgkmcnt(0)" if do_vread else ""))
        post[31].append("s_barrier")
    elif do_vread:
        post[31].append("s_waitcnt lgkmcnt(0)")
    if do_kread:
        for i, r in enumerate(k_reads(j + 2)):
            nv[32 + i].append(r)
    if dma:
        d0 = 42
        nv[d0].append(dma[0])
        for i in range(4):
            nv[d0 + 2 + 4*i].append(dma[1 + i])
        nv[d0 + 15].append(dma[5])
    gaps = [nv[g] + va[g] + post[g] for g in range(64)]
    interleave(a, mf, gaps)
    if do_soft:
        a(f"v_max_f32 {vr(V_TMP)}, {vr(V_TMP)}, {vr(V_T+3)}")
        a(f"v_cmp_lt_f32 vcc, {sr(S_THR)}, {vr(V_TMP)}")
        if do_kread: a("s_waitcnt lgkmcnt(0)")
        stub = a.newlabel("rare_stub"); back = a.newlabel("rare_back")
        a(f"s_cbranch_vccnz {stub}")
        a.label(back)
        rare_stubs.append((stub, back, j & 1))
    else:
        if do_kread: a("s_waitcnt lgkmcnt(0)")

def xlane_reduce(a, op, x, t):
    a(f"v_mov_b32 {vr(t)}, {vr(x)}")
    a("s_nop 1")
    a(f"v_permlane16_swap_b32 {vr(x)}, {vr(t)}")
    a("s_nop 1")
    a(f"{op} {vr(x)}, {vr(x)}, {vr(t)}")
    a(f"v_mov_b32 {vr(t)}, {vr(x)}")
    a("s_nop 1")
    a(f"v_permlane32_swap_b32 {vr(x)}, {vr(t)}")
    a("s_nop 1")
    a(f"{op} {vr(x)}, {vr(x)}, {vr(t)}")

def rowmax(a, b, qt, X):
    s = [vr(Sreg(b, kt, qt, r)) for kt in range(2) for r in range(4)]
    a(f"v_max3_f32 {vr(X)}, {s[0]}, {s[1]}, {s[2]}")
    a(f"v_max3_f32 {vr(X)}, {vr(X)}, {s[3]}, {s[4]}")
    a(f"v_max3_f32 {vr(X)}, {vr(X)}, {s[5]}, {s[6]}")
    a(f"v_max_f32 {vr(X)}, {vr(X)}, {s[7]}")
    xlane_reduce(a, "v_max_f32", X, X + 1)

def gen_rare(a, b):
    a.label(f"rare_path_{b}")
    a("s_nop 15")
    X = V_X
    for qt in range(4):
        rowmax(a, b, qt, X)
        a(f"v_max_f32 {vr(X)}, 0, {vr(X)}")
        a(f"v_sub_f32 {vr(X+1)}, 0, {vr(X)}")
        a(f"v_exp_f32 {vr(X+1)}, {vr(X+1)}")
        for r in range(4):
            a(f"v_sub_f32 {vr(V_NEGM+qt*4+r)}, {vr(V_NEGM+qt*4+r)}, {vr(X)}")
        for kt in range(2):
            for r in range(4):
                a(f"v_sub_f32 {vr(Sreg(b,kt,qt,r))}, {vr(Sreg(b,kt,qt,r))}, {vr(X)}")
                a(f"v_sub_f32 {vr(Sreg(1-b,kt,qt,r))}, {vr(Sreg(1-b,kt,qt,r))}, {vr(X)}")
        a(f"v_mul_f32 {vr(V_L+qt)}, {vr(V_L+qt)}, {vr(X+1)}")
        for dt in range(8):
            for r in range(4):
                a(f"v_accvgpr_read_b32 {vr(X+2+r)}, {ar(Oreg(dt,qt)+r)}")
            for r in range(4):
                a(f"v_mul_f32 {vr(X+2+r)}, {vr(X+2+r)}, {vr(X+1)}")
            for r in range(4):
                a(f"v_accvgpr_write_b32 {ar(Oreg(dt,qt)+r)}, {vr(X+2+r)}")
        first = True
        for kt in range(2):
            for rp in range(2):
                a(f"v_exp_f32 {vr(X+2)}, {vr(Sreg(b,kt,qt,2*rp))}")
                a(f"v_exp_f32 {vr(X+3)}, {vr(Sreg(b,kt,qt,2*rp+1))}")
                a("s_nop 0")
                if first:
                    a(f"v_add_f32 {vr(V_T+qt)}, {vr(X+2)}, {vr(X+3)}")
                else:
                    a(f"v_add_f32 {vr(V_T+qt)}, {vr(V_T+qt)}, {vr(X+2)}")
                    a(f"v_add_f32 {vr(V_T+qt)}, {vr(V_T+qt)}, {vr(X+3)}")
                first = False
                a(f"v_cvt_pk_bf16_f32 {vr(Preg(b,qt)+kt*2+rp)}, {vr(X+2)}, {vr(X+3)}")
    a("s_nop 7")
    a(f"s_setpc_b64 {sr(S_RET,2)}")

def gen_addr_setup(a):
    L = V_LANE; X = V_X
    a(f"v_and_b32 {vr(L)}, 63, v0")
    a(f"v_lshrrev_b32 {vr(X)}, 6, v0")
    a("s_nop 0")
    a(f"v_readfirstlane_b32 {sr(S_WAVE)}, {vr(X)}")
    a(f"v_and_b32 {vr(X)}, 15, {vr(L)}")
    a(f"v_lshrrev_b32 {vr(X+1)}, 4, {vr(L)}")
    a(f"v_lshrrev_b32 {vr(X+2)}, 2, {vr(X)}")
    a(f"v_and_b32 {vr(X+3)}, 3, {vr(X)}")
    a(f"v_mul_u32_u24 {vr(X+4)}, {BLK}, {vr(X+2)}")
    a(f"v_lshlrev_b32 {vr(V_XNO)}, 4, {vr(L)}")
    a(f"v_lshl_add_u32 {vr(X+5)}, {vr(X+3)}, 8, {vr(X+4)}")
    a(f"v_xor_b32 {vr(X+6)}, {vr(X+1)}, {vr(X+3)}")
    a(f"v_lshl_add_u32 {vr(V_KA)}, {vr(X+6)}, 4, {vr(X+5)}")
    a(f"v_lshl_add_u32 {vr(X+5)}, {vr(X+1)}, 8, {vr(X+4)}")
    a(f"v_and_b32 {vr(X+6)}, 1, {vr(X+1)}")
    a(f"v_lshlrev_b32 {vr(X+7)}, 1, {vr(X+6)}")
    a(f"v_xor_b32 {vr(X+7)}, {vr(X+7)}, {vr(X+3)}")
    a(f"v_lshl_add_u32 {vr(X+7)}, {vr(X+7)}, 4, {vr(X+5)}")
    a(f"v_add_u32 {vr(V_WQA)}, {VREG}, {vr(X+7)}")
    a(f"v_lshl_add_u32 {vr(X+5)}, {vr(X+3)}, 3, {vr(X+5)}")
    a(f"v_lshlrev_b32 {vr(X+6)}, 5, {vr(X+6)}")
    a(f"v_add_u32 {vr(X+7)}, {vr(X+5)}, {vr(X+6)}")
    a(f"v_sub_u32 {vr(X+8)}, {vr(X+5)}, {vr(X+6)}")
    a(f"v_add_u32 {vr(V_VA)}, {VREG}, {vr(X+7)}")
    a(f"v_add_u32 {vr(V_VA+1)}, {VREG}, {vr(X+8)}")
    a(f"v_add_u32 {vr(V_VA+2)}, {VREG + 2*KTILE}, {vr(X+7)}")
    a(f"v_add_u32 {vr(V_VA+3)}, {VREG + 2*KTILE}, {vr(X+8)}")
    a(f"v_lshl_add_u32 {vr(X+5)}, {vr(X+1)}, 2, {vr(X+2)}")
    a(f"v_bfe_u32 {vr(X+6)}, {vr(X+5)}, 1, 2")
    a(f"v_lshlrev_b32 {vr(X+5)}, 7, {vr(X+5)}")
    a(f"v_lshl_add_u32 {vr(X+5)}, {vr(X+3)}, 3, {vr(X+5)}")
    a(f"v_add_u32 {vr(X+5)}, {KREG + 2*KTILE}, {vr(X+5)}")
    for nt in range(4):
        a(f"v_xor_b32 {vr(X+7)}, {nt}, {vr(X+6)}")
        a(f"v_lshl_add_u32 {vr(V_W1A+nt)}, {vr(X+7)}, 5, {vr(X+5)}")
    a(f"s_lshl_b32 {sr(S_T0)}, {sr(S_WAVE)}, 12")
    a(f"v_xor_b32 {vr(X+2)}, {vr(X)}, {vr(X+1)}")
    a(f"v_lshlrev_b32 {vr(X+2)}, 4, {vr(X+2)}")
    a(f"v_lshl_add_u32 {vr(X+2)}, {vr(X+1)}, 8, {vr(X+2)}")
    a(f"v_add_u32 {vr(X+2)}, {sr(S_T0)}, {vr(X+2)}")
    for i in range(4):
        a(f"v_add_u32 {vr(V_KD+i)}, {256 - 64*i}, {vr(X+2)}")
    a(f"v_and_b32 {vr(X+2)}, 1, {vr(X+1)}")
    a(f"v_lshlrev_b32 {vr(X+2)}, 1, {vr(X+2)}")
    a(f"v_xor_b32 {vr(X+2)}, {vr(X+2)}, {vr(X)}")
    a(f"v_lshlrev_b32 {vr(X+2)}, 4, {vr(X+2)}")
    a(f"v_lshl_add_u32 {vr(X+3)}, {vr(X+1)}, 10, {vr(X+2)}")
    a(f"v_add_u32 {vr(X+3)}, {sr(S_T0)}, {vr(X+3)}")
    for i in range(4):
        a(f"v_add_u32 {vr(V_VD+i)}, {2560 - 832*i}, {vr(X+3)}")
    a(f"s_lshl_b32 {sr(S_T0)}, {sr(S_WAVE)}, 17")
    a(f"v_lshl_add_u32 {vr(X+3)}, {vr(X+1)}, 15, {vr(X+2)}")
    a(f"v_add_u32 {vr(X+3)}, {sr(S_T0)}, {vr(X+3)}")
    for i in range(4):
        a(f"v_add_u32 {vr(V_WQD+i)}, {7104*i}, {vr(X+3)}")
    a(f"v_lshrrev_b32 {vr(X+2)}, 3, {vr(L)}")
    a(f"s_lshl_b32 {sr(S_T0)}, {sr(S_WAVE)}, 4")
    a(f"v_add_u32 {vr(X+2)}, {sr(S_T0)}, {vr(X+2)}")
    a(f"v_mul_u32_u24 {vr(X+2)}, 3584, {vr(X+2)}")
    a(f"v_and_b32 {vr(X+3)}, 7, {vr(L)}")
    a(f"v_lshlrev_b32 {vr(X+4)}, 1, {vr(X+1)}")
    a(f"v_xor_b32 {vr(X+3)}, {vr(X+3)}, {vr(X+4)}")
    a(f"v_lshl_add_u32 {vr(V_W1D)}, {vr(X+3)}, 4, {vr(X+2)}")
    a(f"v_add_u32 {vr(V_W1D+1)}, {28672-1024}, {vr(V_W1D)}")
    a(f"s_mul_i32 {sr(S_M0K)}, {sr(S_WAVE)}, {4*BLK}")
    a(f"s_add_u32 {sr(S_M0V)}, {sr(S_M0K)}, {VREG}")
    a(f"s_lshl_b32 {sr(S_M0W1)}, {sr(S_WAVE)}, 11")
    a(f"s_add_u32 {sr(S_M0W1)}, {sr(S_M0W1)}, {KREG + 2*KTILE}")

def dma_w(c):
    st = c & 3
    out = [f"s_add_u32 m0, {sr(S_M0V)}, {st * KTILE}"]
    for i in range(4):
        out.append(f"buffer_load_dwordx4 {vr(V_WQD+i)}, {sr(S_WQSRD,4)}, {sr(S_WQOFF)} offen offset:{i*BLK} lds")
    out.append(f"s_add_u32 m0, {sr(S_M0W1)}, {st * W1SLOT}")
    for i in range(2):
        out.append(f"buffer_load_dwordx4 {vr(V_W1D+i)}, {sr(S_W1SRD,4)}, {sr(S_W1OFF)} offen offset:{i*1024} lds")
    out.append(f"s_add_u32 {sr(S_WQOFF)}, {sr(S_WQOFF)}, {64*8192}")
    out.append(f"s_add_u32 {sr(S_W1OFF)}, {sr(S_W1OFF)}, {64*3584}")
    return out

def XNreg(ks, mt): return A_XN + (ks % 8) * 16 + mt * 4
def xn_loads(ks):
    out = [f"s_add_u32 s27, {sr(S_XOFF)}, {ks * 1024}"]
    res = []
    for mt in range(4):
        res.append(f"s_add_u32 s27, {sr(S_XOFF)}, {mt * 16384 + ks * 1024}")
        res.append(f"buffer_load_dwordx4 {ar(XNreg(ks, mt), 4)}, {vr(V_XNO)}, {sr(S_XSRD,4)}, s27 offen")
    return res

def WFreg(f): return A_WF + (f % 16) * 4
def QAcc(nt, mt): return V_Q + (nt * 4 + mt) * 4
def FAcc(nt, mt): return V_S + (nt * 4 + mt) * 4

def w_frag_reads(f):
    ks, nt = divmod(f, 12)
    c, s = ks >> 1, ks & 1
    st = c & 3
    out = []
    for sec in range(2):
        if nt < 8:
            v, u = nt >> 1, nt & 1
            off = st * KTILE + (2 * s + sec) * 4 * BLK + v * 64 + 8 * u
            base = V_WQA
        else:
            off = st * W1SLOT + s * 4096 + sec * 2048
            base = V_W1A + (nt - 8)
        assert off < 65536
        out.append(f"ds_read_b64_tr_b16 {ar(WFreg(f) + 2*sec, 2)}, {vr(base)} offset:{off}")
    return out

def gen_prologue_gemm(a, cfg, vm):
    D = 6
    NF = 192
    def emit_vm(lst, tag):
        for s in lst:
            a(s)
            if s.startswith("s_add_u32 m0"): a("s_nop 0")
            if s.startswith("buffer_"): vm.issue(tag)
    for c in range(4):
        emit_vm(dma_w(c), f"W{c}")
        emit_vm(xn_loads(2*c), f"X{2*c}")
        emit_vm(xn_loads(2*c+1), f"X{2*c+1}")
    extra = {}
    def add_extra(t, lst, tag):
        extra.setdefault(t, []).extend((s, tag) for s in lst)
    a(f"s_waitcnt vmcnt({vm.need({'W0'})})")
    a("s_barrier")
    for f in range(D):
        for s in w_frag_reads(f): a(s)
    for f in range(NF):
        ks, nt = divmod(f, 12)
        gaps = [[] for _ in range(4)]
        pre = []
        if nt == 0:
            pre.append(f"s_waitcnt vmcnt({vm.need({f'X{ks}'})})")
        nafter = 2 * (min(f + D - 1, NF - 1) - f)
        pre.append(f"s_waitcnt lgkmcnt({nafter})")
        fr = f + D
        bar = []
        if fr < NF and fr % 24 == 0:
            c = fr // 24
            bar = [f"s_waitcnt vmcnt({vm.need({f'W{c}'})})", "s_barrier"]
            if 4 <= c + 2 <= 7:
                add_extra(f, dma_w(c + 2), f"W{c+2}")
            if c == 4:
                add_extra(f + 4, dma_k(0), "K0")
                add_extra(f + 8, dma_k(1), "K1")
            if c == 6:
                add_extra(f, dma_v(0), "V0")
            if c == 7:
                add_extra(f, dma_k(2), "K2")
                add_extra(f + 4, dma_v(1), "V1")
        for s in pre: a(s)
        for s in bar: a(s)
        rd = w_frag_reads(fr) if fr < NF else []
        if nt == 11 and ks + 8 < 16:
            add_extra(f + 1, xn_loads(ks + 8), f"X{ks+8}")
        ex = []
        for t in sorted(list(extra.keys())):
            if t <= f:
                q = extra[t]
                while q and len(ex) < 2:
                    ex.append(q.pop(0))
                if not q: del extra[t]
            if len(ex) >= 2: break
        for mt in range(4):
            if nt < 8: acc = vr(QAcc(nt, mt), 4)
            else: acc = vr(FAcc(nt - 8, mt), 4)
            cc = "0" if ks == 0 else acc
            a(f"{MF} {acc}, {ar(WFreg(f),4)}, {ar(XNreg(ks,mt),4)}, {cc}")
            if mt < 2 and mt < len(rd): a(rd[mt])
            if mt >= 2 and mt - 2 < len(ex):
                s, tag = ex[mt - 2]
                a(s)
                if s.startswith("buffer_"): vm.issue(tag)
    for t in sorted(extra.keys()):
        for s, tag in extra[t]:
            a(s)
            if s.startswith("s_add_u32 m0"): a("s_nop 0")
            if s.startswith("buffer_"): vm.issue(tag)

def gen_attn(a, name, cfg):
    kernel_header(a, name)
    a("s_cmp_ge_u32 s2, 256")
    a("s_cbranch_scc1 attn_end")
    stamp(a, 0, cfg)
    a("s_load_dwordx4 s[36:39], s[0:1], 8")
    a("s_load_dwordx2 s[56:57], s[0:1], 24")
    a("s_load_dwordx2 s[58:59], s[0:1], 48")
    a(f"s_load_dwordx2 s[{S_WS}:{S_WS+1}], s[0:1], 80")
    a(f"s_and_b32 {sr(S_HEAD)}, s2, 7")
    a(f"s_lshl_b32 {sr(S_HEAD)}, {sr(S_HEAD)}, 2")
    a(f"s_lshr_b32 {sr(S_QB)}, s2, 3")
    a(f"s_and_b32 s26, {sr(S_QB)}, 3")
    a(f"s_add_u32 {sr(S_HEAD)}, {sr(S_HEAD)}, s26")
    a(f"s_lshr_b32 {sr(S_QB)}, {sr(S_QB)}, 2")
    gen_addr_setup(a)
    a("s_waitcnt lgkmcnt(0)")
    a(f"s_lshl_b32 s26, {sr(S_HEAD)}, 19")
    srd(a, S_KSRD, 36, "s26", 524288, 256)
    srd(a, S_VSRD, 38, "s26", 524288, 2560)
    srd(a, S_WQSRD, 56, 0, 512 * 8192)
    srd(a, S_W1SRD, 58, 0, 512 * 3584)
    srd(a, S_XSRD, S_WS, WS_XN, 2 << 20)
    srd(a, S_OSRD, S_WS, WS_O, 16 << 20)
    srd(a, S_HSRD, S_WS, WS_H, 7 << 20)
    a(f"s_lshl_b32 {sr(S_WQOFF)}, {sr(S_HEAD)}, 8")
    a(f"s_lshl_b32 {sr(S_W1OFF)}, {sr(S_HEAD)}, 7")
    a(f"s_lshl_b32 s26, {sr(S_QB)}, 4")
    a(f"s_lshl_b32 s27, {sr(S_WAVE)}, 2")
    a(f"s_add_u32 s35, s26, s27")
    a(f"s_lshl_b32 {sr(S_XOFF)}, s35, 14")
    a(f"s_mov_b32 {sr(S_OFFK)}, 0")
    a(f"s_mov_b32 {sr(S_OFFV)}, 0")
    a(f"s_mov_b32 {sr(S_THR)}, 0x{cfg.get('thr', 0x4b800000):08x}")
    vm = VM()
    gen_prologue_gemm(a, cfg, vm)
    stamp(a, 1, cfg)
    X = V_X
    a("s_nop 7")
    a(f"s_cmp_ge_u32 {sr(S_HEAD)}, 28")
    a("s_cbranch_scc1 attn_skip_h")
    a(f"s_mul_i32 s26, s35, 56")
    a(f"s_lshl_b32 s27, {sr(S_HEAD)}, 1")
    a(f"s_add_u32 s26, s26, s27")
    a(f"s_lshl_b32 s26, s26, 10")
    for mt in range(4):
        for v in range(2):
            t0, t1 = FAcc(2*v, mt), FAcc(2*v+1, mt)
            d = t0
            a(f"v_cvt_pk_bf16_f32 {vr(d)}, {vr(t0)}, {vr(t0+1)}")
            a(f"v_cvt_pk_bf16_f32 {vr(d+1)}, {vr(t0+2)}, {vr(t0+3)}")
            a(f"v_cvt_pk_bf16_f32 {vr(d+2)}, {vr(t1)}, {vr(t1+1)}")
            a(f"v_cvt_pk_bf16_f32 {vr(d+3)}, {vr(t1+2)}, {vr(t1+3)}")
            for r in range(4):
                a(f"v_pk_max_i16 {vr(d+r)}, {vr(d+r)}, 0")
        a(f"s_add_u32 s27, s26, {mt*56*1024}")
        for v in range(2):
            a(f"buffer_store_dwordx4 {vr(FAcc(2*v,mt),4)}, {vr(V_XNO)}, {sr(S_HSRD,4)}, s27 offen offset:{v*1024}")
    a.label("attn_skip_h")
    for _ in range(8): vm.issue("H")
    a(f"s_mov_b32 s26, 0x3e0293ee")
    a(f"s_mov_b32 s27, 0x3e0293ee")
    for v in range(4):
        for mt in range(4):
            t0, t1 = QAcc(2*v, mt), QAcc(2*v+1, mt)
            for t in (t0, t1):
                a(f"v_pk_mul_f32 {vr(t,2)}, {vr(t,2)}, s[26:27]")
                a(f"v_pk_mul_f32 {vr(t+2,2)}, {vr(t+2,2)}, s[26:27]")
            d = Qreg(mt, v)
            a(f"v_cvt_pk_bf16_f32 {vr(d)}, {vr(t0)}, {vr(t0+1)}")
            a(f"v_cvt_pk_bf16_f32 {vr(d+1)}, {vr(t0+2)}, {vr(t0+3)}")
            a(f"v_cvt_pk_bf16_f32 {vr(d+2)}, {vr(t1)}, {vr(t1+1)}")
            a(f"v_cvt_pk_bf16_f32 {vr(d+3)}, {vr(t1+2)}, {vr(t1+3)}")
    for q in range(4):
        a(f"v_mov_b32 {vr(V_L+q)}, 0")
    def need_safe(tags):
        ops = [t for t in vm.ops if t != "H"]
        sv = vm.ops; vm.ops = ops; n = vm.need(tags); vm.ops = sv
        return n
    a(f"s_waitcnt vmcnt({need_safe({'K0'})}) lgkmcnt(0)")
    a("s_barrier")
    for s in dma_k(3):
        a(s)
        if s.startswith("s_add_u32 m0"): a("s_nop 0")
        if s.startswith("buffer_"): vm.issue("K3")
    for s in k_reads(0): a(s)
    a("s_waitcnt lgkmcnt(0)")
    for s in qk_mfmas(0, zero_c=True): a(s)
    for s in k_reads(1): a(s)
    a("s_nop 7")
    for qt in range(4):
        rowmax(a, 0, qt, X)
        for r in range(4):
            a(f"v_sub_f32 {vr(V_NEGM+qt*4+r)}, 0, {vr(X)}")
        for kt in range(2):
            for r in range(4):
                a(f"v_sub_f32 {vr(Sreg(0,kt,qt,r))}, {vr(Sreg(0,kt,qt,r))}, {vr(X)}")
    a("s_waitcnt lgkmcnt(0)")
    a("s_nop 1")
    stubs = []
    vm.ops = [t for t in vm.ops if t != "H"]
    bvms = {}
    def slot(j, loop=False, **kw):
        n = j >> 1
        dma = None; bvm = None; tag = None
        if j % 2 == 0:
            bvm = vm.need({f"V{n}", f"K{n+1}"} if n + 1 <= 31 else {f"V{n}"})
            if n + 2 <= 31: dma = dma_v(n + 2); tag = f"V{n+2}"
        else:
            if n + 4 <= 31 or j <= 57: dma = dma_k(n + 4); tag = f"K{n+4}"
        if dma:
            for _ in range(4): vm.issue(tag)
        bvms[j] = bvm
        return dma, bvm
    stamp(a, 2, cfg)
    dma, bvm = slot(0)
    gen_slot(a, 0, cfg, dma=dma, barrier_vm=bvm, rare_stubs=stubs, do_pv=False, do_vread=False, first_l=True)
    dma, bvm = slot(1)
    gen_slot(a, 1, cfg, dma=dma, barrier_vm=bvm, rare_stubs=stubs, pv_zero=True)
    sim = []
    for j in range(2, 58):
        sim.append(slot(j))
    for j in range(10, 58):
        assert sim[j - 2][1] == sim[(j - 2) % 8][1], (j, sim[j-2][1], sim[(j-2) % 8][1])
        assert (sim[j - 2][0] is None) == (sim[(j - 2) % 8][0] is None)
    a(f"s_mov_b32 {sr(S_CNT)}, 0")
    a(".p2align 6")
    a.label("attn_loop")
    for j in range(2, 10):
        gen_slot(a, j, cfg, dma=sim[j-2][0], barrier_vm=sim[j-2][1], rare_stubs=stubs)
    a(f"s_add_u32 {sr(S_CNT)}, {sr(S_CNT)}, 1")
    a(f"s_cmp_lt_u32 {sr(S_CNT)}, 7")
    a("s_cbranch_scc1 attn_loop")
    for j in range(58, 64):
        dma, bvm = slot(j)
        gen_slot(a, j, cfg, dma=dma, barrier_vm=bvm, rare_stubs=stubs, do_qk=(j + 1 <= 63), do_kread=(j + 2 <= 63))
    gen_slot(a, 64, cfg, do_qk=False, do_soft=False, do_kread=False, rare_stubs=stubs)
    stamp(a, 3, cfg)
    a("s_nop 7")
    for qt in range(4):
        xlane_reduce(a, "v_add_f32", V_L + qt, X)
        a(f"v_rcp_f32 {vr(V_L+qt)}, {vr(V_L+qt)}")
    a(f"s_lshl_b32 s26, s35, 7")
    a(f"s_lshl_b32 s27, {sr(S_HEAD)}, 2")
    a(f"s_add_u32 s26, s26, s27")
    a(f"s_lshl_b32 s26, s26, 10")
    k = 0
    for qt in range(4):
        a(f"s_add_u32 s27, s26, {qt*128*1024}")
        for u in range(4):
            base = 64 + (k % 8) * 12
            for r in range(4):
                a(f"v_accvgpr_read_b32 {vr(base+r)}, {ar(Oreg(2*u,qt)+r)}")
                a(f"v_accvgpr_read_b32 {vr(base+4+r)}, {ar(Oreg(2*u+1,qt)+r)}")
            for r in range(8):
                a(f"v_mul_f32 {vr(base+r)}, {vr(base+r)}, {vr(V_L+qt)}")
            for r in range(4):
                a(f"v_cvt_pk_bf16_f32 {vr(base+8+r)}, {vr(base+2*r)}, {vr(base+2*r+1)}")
            a(f"buffer_store_dwordx4 {vr(base+8,4)}, {vr(V_XNO)}, {sr(S_OSRD,4)}, s27 offen offset:{u*1024}")
            k += 1
    if cfg.get("stamps"):
        stamp(a, 4, cfg)
        write_stamps(a, cfg, S_WAVE, S_WS, "attn_end", 0, X)
    a.label("attn_end")
    a("s_endpgm")
    for stub, back, b in stubs:
        a.label(stub)
        a(f"s_call_b64 {sr(S_RET,2)}, rare_path_{b}")
        a(f"s_branch {back}")
    gen_rare(a, 0)
    gen_rare(a, 1)
    a("s_endpgm")

def gen_out(a, name, cfg):
    kernel_header(a, name)
    a("s_cmp_ge_u32 s2, 256")
    a("s_cbranch_scc1 out_end")
    stamp(a, 0, cfg)
    a("s_load_dwordx2 s[4:5], s[0:1], 0")
    a("s_load_dwordx2 s[6:7], s[0:1], 32")
    a("s_load_dwordx2 s[8:9], s[0:1], 56")
    a("s_load_dwordx2 s[10:11], s[0:1], 64")
    a("s_load_dwordx2 s[28:29], s[0:1], 80")
    SW, SMB, SNB = 32, 33, 34
    a(f"s_and_b32 s{SMB}, s2, 7")
    a(f"s_lshl_b32 s{SMB}, s{SMB}, 2")
    a(f"s_lshr_b32 s{SNB}, s2, 3")
    a(f"s_and_b32 s26, s{SNB}, 3")
    a(f"s_add_u32 s{SMB}, s{SMB}, s26")
    a(f"s_lshr_b32 s{SNB}, s{SNB}, 2")
    L = 1; X = 8
    a(f"v_and_b32 v{L}, 63, v0")
    a(f"v_lshrrev_b32 v{X}, 6, v0")
    a("s_nop 0")
    a(f"v_readfirstlane_b32 s{SW}, v{X}")
    V_WD = 2
    V_OB = 6
    V_OB, V_HB, V_AR = 10, 14, 18
    X = 24
    a(f"v_lshrrev_b32 v{X}, 4, v{L}")
    a(f"v_and_b32 v{X+1}, 15, v{L}")
    a(f"v_lshrrev_b32 v{X+2}, 2, v{X+1}")
    a(f"v_and_b32 v{X+3}, 3, v{L}")
    a(f"v_lshrrev_b32 v{X+4}, 3, v{L}")
    a(f"v_and_b32 v{X+5}, 7, v{L}")
    a(f"v_lshlrev_b32 v{X+6}, 1, v{X}")
    a(f"v_xor_b32 v{X+5}, v{X+5}, v{X+6}")
    a(f"v_lshlrev_b32 v{X+5}, 4, v{X+5}")
    a(f"v_lshl_add_u32 v{X+5}, v{X+4}, 10, v{X+5}")
    a(f"s_lshl_b32 s26, s{SNB}, 7")
    a(f"v_add_u32 v{X+5}, s26, v{X+5}")
    for i in range(4):
        a(f"v_add_u32 v{V_WD+i}, {7168*i}, v{X+5}")
    a(f"v_lshlrev_b32 v{X+4}, 4, v{L}")
    for mt in range(4):
        a(f"s_add_u32 s26, s{SW}, {mt}")
        a(f"s_and_b32 s26, s26, 3")
        a(f"s_lshl_b32 s27, s26, 17")
        a(f"v_add_u32 v{V_OB+mt}, s27, v{X+4}")
        a(f"s_mul_i32 s27, s26, {56*1024}")
        a(f"v_add_u32 v{V_HB+mt}, s27, v{X+4}")
    RING = 8
    WB = RING * 4096
    a(f"v_lshl_add_u32 v{X+4}, v{X}, 2, v{X+2}")
    a(f"v_bfe_u32 v{X+5}, v{X+4}, 1, 2")
    a(f"v_lshlrev_b32 v{X+4}, 7, v{X+4}")
    a(f"v_lshl_add_u32 v{X+4}, v{X+3}, 3, v{X+4}")
    a(f"s_mul_i32 s35, s{SW}, {WB}")
    a(f"v_add_u32 v{X+4}, s35, v{X+4}")
    for nt in range(4):
        a(f"v_xor_b32 v{X+6}, {nt}, v{X+5}")
        a(f"v_lshl_add_u32 v{V_AR+nt}, v{X+6}, 5, v{X+4}")
    a("s_waitcnt lgkmcnt(0)")
    WO, W2, OS, HS, XS, OUTS = 36, 40, 44, 48, 52, 56
    srd(a, WO, 6, 0, 4096 * 1024)
    srd(a, W2, 8, 0, 1792 * 1024)
    srd(a, OS, 28, WS_O, 16 << 20)
    srd(a, HS, 28, WS_H, 7 << 20)
    srd(a, XS, 4, 0, 2 << 20)
    srd(a, OUTS, 10, 0, 2 << 20)
    a(f"s_lshl_b32 s62, s{SW}, 20")
    a(f"s_lshl_b32 s63, s{SMB}, 9")
    a(f"s_lshl_b32 s26, s{SW}, 5")
    a(f"s_add_u32 s63, s63, s26")
    a(f"s_lshl_b32 s63, s63, 10")
    a(f"s_mul_i32 s64, s{SW}, {14*32*1024}")
    a(f"s_mul_i32 s65, s{SMB}, {4*56}")
    a(f"s_mul_i32 s26, s{SW}, 14")
    a(f"s_add_u32 s65, s65, s26")
    a(f"s_lshl_b32 s65, s65, 10")
    NS = 46
    ACC = {0: 64, 1: 128}
    def BF(i, mt): return (i % RING) * 16 + mt * 4
    def AF(i, nt): return 128 + ((i % 4) * 4 + nt) * 4
    vm = VM()
    def loads(i):
        part = 0 if i < 32 else 1
        k = i if part == 0 else i - 32
        out = []
        out.append(f"s_add_u32 m0, s35, {(i % RING) * 4096}")
        out.append(f"s_add_u32 s60, s{62 if part == 0 else 64}, {k * 32 * 1024}")
        for q in range(4):
            out.append(f"buffer_load_dwordx4 v{V_WD+q}, s[{WO if part == 0 else W2}:{(WO if part == 0 else W2)+3}], s60 offen offset:{q*1024} lds")
        out.append(f"s_add_u32 s61, s{63 if part == 0 else 65}, {k * 1024}")
        for mt in range(4):
            vo = (V_OB if part == 0 else V_HB) + mt
            sd = OS if part == 0 else HS
            out.append(f"buffer_load_dwordx4 a[{BF(i,mt)}:{BF(i,mt)+3}], v{vo}, s[{sd}:{sd+3}], s61 offen")
        return out
    def areads(i):
        out = []
        for nt in range(4):
            for sec in range(2):
                off = (i % RING) * 4096 + sec * 2048
                out.append(f"ds_read_b64_tr_b16 a[{AF(i,nt)+2*sec}:{AF(i,nt)+2*sec+1}], v{V_AR+nt} offset:{off}")
        return out
    def emit(lst, tag):
        for s in lst:
            a(s)
            if s.startswith("buffer_"): vm.issue(tag)
    PF = RING - 1
    for i in range(PF):
        emit(loads(i), f"L{i}")
    stamp(a, 1, cfg)
    a(f"s_waitcnt vmcnt({vm.need({'L0'})})")
    for s in areads(0): a(s)
    for i in range(NS):
        part = 0 if i < 32 else 1
        first = (i == 0 or i == 32)
        nxt = []
        if i + 1 < NS:
            nxt = areads(i + 1)
        ld = loads(i + PF) if i + PF < NS else []
        a(f"s_waitcnt lgkmcnt(0)")
        if i + 1 < NS:
            a(f"s_waitcnt vmcnt({vm.need({f'L{i+1}'})})")
        fill = []
        gaps = [[] for _ in range(16)]
        for q, s in enumerate(nxt): gaps[q].append(s)
        for q, s in enumerate(ld): gaps[min(15, 4 + q)].append(s)
        g = 0
        for nt in range(4):
            for mt in range(4):
                acc = ACC[part] + (nt * 4 + mt) * 4
                c = "0" if first else f"v[{acc}:{acc+3}]"
                a(f"{MF} v[{acc}:{acc+3}], a[{AF(i,nt)}:{AF(i,nt)+3}], a[{BF(i,mt)}:{BF(i,mt)+3}], {c}")
                for s in gaps[g]:
                    a(s)
                    if s.startswith("buffer_"): vm.issue(f"L{i+PF}")
                g += 1
    stamp(a, 2, cfg)
    a("s_nop 7")
    a("s_barrier")
    a(f"v_lshlrev_b32 v{X}, 4, v{L}")
    for rel in range(1, 4):
        a(f"s_add_u32 s26, s{SW}, {rel}")
        a(f"s_and_b32 s26, s26, 3")
        a(f"s_mul_i32 s26, s26, 24576")
        a(f"s_add_u32 s26, s26, {(rel-1)*8192}")
        a(f"v_add_u32 v{X+rel}, s26, v{X}")
    for rel in range(1, 4):
        for st in range(2):
            for nt in range(4):
                acc = ACC[st] + (nt * 4 + rel) * 4
                a(f"ds_write_b128 v{X+rel}, v[{acc}:{acc+3}] offset:{(st*4+nt)*1024}")
    a(f"v_and_b32 v{X+4}, 15, v{L}")
    a(f"v_lshrrev_b32 v{X+5}, 4, v{L}")
    a(f"v_lshlrev_b32 v{X+4}, 10, v{X+4}")
    a(f"v_lshl_add_u32 v{X+4}, v{X+5}, 3, v{X+4}")
    a(f"s_lshl_b32 s26, s{SMB}, 6")
    a(f"s_lshl_b32 s27, s{SW}, 4")
    a(f"s_add_u32 s26, s26, s27")
    a(f"s_lshl_b32 s26, s26, 10")
    a(f"s_lshl_b32 s27, s{SNB}, 7")
    a(f"s_add_u32 s66, s26, s27")
    XR = 32
    for nt in range(4):
        a(f"buffer_load_dwordx2 v[{XR+2*nt}:{XR+2*nt+1}], v{X+4}, s[{XS}:{XS+3}], s66 offen offset:{nt*32}")
    a(f"s_mul_i32 s26, s{SW}, 24576")
    a(f"v_add_u32 v{X+5}, s26, v{X}")
    a("s_waitcnt lgkmcnt(0)")
    a("s_barrier")
    T = 192
    for st in range(2):
        for r in range(3):
            for nt in range(4):
                d = T + (r * 4 + nt) * 4
                a(f"ds_read_b128 v[{d}:{d+3}], v{X+5} offset:{(r*8+st*4+nt)*1024}")
        a("s_waitcnt lgkmcnt(0)")
        for nt in range(4):
            acc = ACC[st] + (nt * 4 + 0) * 4
            for r in range(3):
                d = T + (r * 4 + nt) * 4
                for e in range(4):
                    a(f"v_add_f32 v{acc+e}, v{acc+e}, v{d+e}")
    a("s_waitcnt vmcnt(0)")
    TT = 192
    for nt in range(4):
        sa = ACC[0] + nt * 16
        fa = ACC[1] + nt * 16
        t = TT + nt * 16
        a(f"v_cvt_pk_bf16_f32 v{t}, v{sa}, v{sa+1}")
        a(f"v_cvt_pk_bf16_f32 v{t+1}, v{sa+2}, v{sa+3}")
        a(f"v_cvt_pk_bf16_f32 v{t+2}, v{fa}, v{fa+1}")
        a(f"v_cvt_pk_bf16_f32 v{t+3}, v{fa+2}, v{fa+3}")
        for e in range(4):
            src_s = t + (e >> 1); src_f = t + 2 + (e >> 1)
            if e & 1:
                a(f"v_and_b32 v{sa+e}, 0xffff0000, v{src_s}")
                a(f"v_and_b32 v{fa+e}, 0xffff0000, v{src_f}")
            else:
                a(f"v_lshlrev_b32 v{sa+e}, 16, v{src_s}")
                a(f"v_lshlrev_b32 v{fa+e}, 16, v{src_f}")
        for e in range(4):
            a(f"v_mul_f32 v{t+4+e}, 0xbfb8aa3b, v{fa+e}")
        for e in range(4):
            a(f"v_exp_f32 v{t+4+e}, v{t+4+e}")
        a("s_nop 0")
        for e in range(4):
            a(f"v_add_f32 v{t+4+e}, 1.0, v{t+4+e}")
        for e in range(4):
            a(f"v_rcp_f32 v{t+4+e}, v{t+4+e}")
        a("s_nop 0")
        for e in range(4):
            a(f"v_mul_f32 v{t+4+e}, v{t+4+e}, v{fa+e}")
        a(f"v_cvt_pk_bf16_f32 v{t}, v{t+4}, v{t+5}")
        a(f"v_cvt_pk_bf16_f32 v{t+1}, v{t+6}, v{t+7}")
        for e in range(4):
            src = t + (e >> 1)
            if e & 1: a(f"v_and_b32 v{t+4+e}, 0xffff0000, v{src}")
            else: a(f"v_lshlrev_b32 v{t+4+e}, 16, v{src}")
        for e in range(4):
            a(f"v_mul_f32 v{t+4+e}, v{t+4+e}, v{sa+e}")
        a(f"v_cvt_pk_bf16_f32 v{t}, v{t+4}, v{t+5}")
        a(f"v_cvt_pk_bf16_f32 v{t+1}, v{t+6}, v{t+7}")
        for e in range(4):
            src = t + (e >> 1)
            if e & 1: a(f"v_and_b32 v{t+4+e}, 0xffff0000, v{src}")
            else: a(f"v_lshlrev_b32 v{t+4+e}, 16, v{src}")
        for e in range(4):
            src = XR + 2 * nt + (e >> 1)
            if e & 1: a(f"v_and_b32 v{t+8+e}, 0xffff0000, v{src}")
            else: a(f"v_lshlrev_b32 v{t+8+e}, 16, v{src}")
        for e in range(4):
            a(f"v_add_f32 v{t+4+e}, v{t+4+e}, v{t+8+e}")
        a(f"v_cvt_pk_bf16_f32 v{t}, v{t+4}, v{t+5}")
        a(f"v_cvt_pk_bf16_f32 v{t+1}, v{t+6}, v{t+7}")
        a(f"buffer_store_dwordx2 v[{t}:{t+1}], v{X+4}, s[{OUTS}:{OUTS+3}], s66 offen offset:{nt*32}")
    if cfg.get("stamps"):
        stamp(a, 3, cfg)
        write_stamps(a, cfg, SW, 28, "out_end", 1, 8, n=16)
    a.label("out_end")
    a("s_endpgm")

LDS_OUT = 4 * 8 * 4096

def build(cfg):
    a = Asm()
    hdr = open("recurrent_scan__mha_block_cached__dense_activation_relu__prompt.s.ref").read().split("; Override launch")[0]
    a.raw(hdr.rstrip())
    only = cfg.get("only")
    ks = [("ln_kernel", 128, 256, 0), ("attn_kernel", 256, 256, LDS_ATTN), ("out_kernel", 256, 256, LDS_OUT)]
    for n, g, b, l in ks:
        if only and n not in only: continue
        a.raw(f"; @launch kernel={n} grid=({g},1,1) block=({b},1,1) lds={l}")
    a.raw('.amdgcn_target "amdgcn-amd-amdhsa--gfx950"')
    gen_ln(a, "ln_kernel", cfg)
    gen_attn(a, "attn_kernel", cfg)
    gen_out(a, "out_kernel", cfg)
    a.raw(kernel_desc("ln_kernel", 96, 32, 96))
    a.raw(kernel_desc("attn_kernel", 512, 102, 256))
    a.raw(kernel_desc("out_kernel", 512, 102, 256))
    return a.text()

if __name__ == "__main__":
    cfg = json.loads(sys.argv[2]) if len(sys.argv) > 2 else {}
    open(sys.argv[1], "w").write(build(cfg))
```
